```python
import torch

def _softmax(x, axis=-1):
    return torch.softmax(x, dim=axis)
def _gelu(x):
    return torch.nn.functional.gelu(x, approximate="tanh")
def _silu(x):
    return torch.nn.functional.silu(x)
def _sigmoid(x):
    return torch.sigmoid(x)
def _layernorm(x, axis=-1, eps=1e-5):
    m = x.mean(dim=axis, keepdim=True)
    v = x.var(dim=axis, keepdim=True, unbiased=False)
    return (x - m) / torch.sqrt(v + eps)
def _scatter_add(tgt, idx, src, axis=0):
    return tgt.clone().index_add_(axis, idx, src)
def _segment_sum(src, seg, n):
    out = torch.zeros((n,) + src.shape[1:], dtype=src.dtype)
    return out.index_add_(0, seg, src)
def _pad(x, pw):
    flat = tuple(v for pair in reversed(pw) for v in pair)
    return torch.nn.functional.pad(x, flat)

kernel_name = 'recurrent_scan__sliding_block_cached__swiglu_ffn__decode'

def setup_inputs():

    _w = (lambda a: (lambda t: t.to(torch.bfloat16) if t.is_floating_point() else t)(torch.as_tensor(a)))
    def _A_setup():
        B, Sq, D = 1, 1, 512
        Hq, Hkv, Sk, Dh = 32, 8, 16384, 128
        assert Hq % Hkv == 0, (Hq, Hkv)
        return {
            "x": _w((lambda *s: torch.randn(*s, dtype=torch.bfloat16) * 0.05)(B, Sq, D)),
            "k_cache": _w((lambda *s: torch.randn(*s, dtype=torch.bfloat16) * 1.6)(B, Hkv, Sk, Dh)),
            "v_cache": _w((lambda *s: torch.randn(*s, dtype=torch.bfloat16) * 0.2)(B, Hkv, Sk, Dh)),
            "wq": _w((lambda *s: torch.randn(*s, dtype=torch.bfloat16) * 1.6)(D, Hq * Dh) * (D ** -0.5)),
            "wo": _w((lambda *s: torch.randn(*s, dtype=torch.bfloat16) * 0.2)(Hq * Dh, D) * ((Hq * Dh) ** -0.5)),
        }
    _A_in = _A_setup()

    def _B_setup():
        B, S, D, F = 1, 1, 512, 1792
        return {
            "x": _w((lambda *s: torch.randn(*s, dtype=torch.bfloat16) * 0.05)(B, S, D)),
            "w_gate": _w((lambda *s: torch.randn(*s, dtype=torch.bfloat16) * 0.1)(D, F)),
            "w_up": _w((lambda *s: torch.randn(*s, dtype=torch.bfloat16) * 0.1)(D, F)),
            "w_down": _w((lambda *s: torch.randn(*s, dtype=torch.bfloat16) * 0.1)(F, D)),
        }
    _B_in = _B_setup()

    return {
        "A_x": _A_in["x"],
        "A_k_cache": _A_in["k_cache"],
        "A_v_cache": _A_in["v_cache"],
        "A_wq": _A_in["wq"],
        "A_wo": _A_in["wo"],
        "B_x": _B_in["x"],
        "B_w_gate": _B_in["w_gate"],
        "B_w_up": _B_in["w_up"],
        "B_w_down": _B_in["w_down"],
    }

def reference(A_x, A_k_cache, A_v_cache, A_wq, A_wo, B_x, B_w_gate, B_w_up, B_w_down):
    def _A_ref(x, k_cache, v_cache, wq, wo):
        B, Sq, D = x.shape
        Hq, Dh = 32, 128
        Hkv, Sk = k_cache.shape[1], k_cache.shape[2]
        W = min(4096, max(256, Sk // 4))
        rep = Hq // Hkv
        q = (lambda x, *d: x.permute(*d))((x @ wq).reshape(B, Sq, Hq, Dh), 0, 2, 1, 3)
        k = (lambda x, n, axis: torch.repeat_interleave(x, n, dim=axis))(k_cache[:, :, Sk - W:, :], rep, axis=1)
        v = (lambda x, n, axis: torch.repeat_interleave(x, n, dim=axis))(v_cache[:, :, Sk - W:, :], rep, axis=1)
        scores = torch.einsum("bhqd,bhkd->bhqk", q, k) * (Dh ** -0.5)
        p = _softmax(scores, axis=-1)
        o = torch.einsum("bhqk,bhkd->bhqd", p, v)
        return (lambda x, *d: x.permute(*d))(o, 0, 2, 1, 3).reshape(B, Sq, Hq * Dh) @ wo

    def _B_ref(x, w_gate, w_up, w_down):
        g = _silu(x @ w_gate)
        u = x @ w_up
        return (g * u) @ w_down

    x = A_x
    xn = _layernorm(x, axis=-1)
    s = _A_ref(xn, A_k_cache, A_v_cache, A_wq, A_wo)
    g = _silu(_B_ref(xn, B_w_gate, B_w_up, B_w_down))
    return x + s * g
```

```python
import sys
NAME = "recurrent_scan__sliding_block_cached__swiglu_ffn__decode"
HDR = open("cdna_kernels/" + NAME + ".s.ref").read().split("; Override launch")[0]

WQ, GU, KL, VL, WO, DN = 0, 16384, 32768, 65536, 98304, 114688
MISC = 122880
XN = MISC
QL = MISC + 1024
PX = MISC + 2304
MX = PX + 4096
LX = MX + 256
OB = LX + 256
HB = OB + 128
GB = HB + 64
FL = GB + 64
LDS_BYTES = 131072
F_WQ, F_Q, F_M, F_P, F_O, F_WO, F_H, F_DN, F_K, F_V, F_KI, F_VI, F_GI, F_GU, F_G = range(15)
EP, QP, GP, OP, ML, SP, BP, DG = 0, 0x1000, 0x20000, 0x40000, 0xC0000, 0xD0000, 0xF0000, 0x200000
LOG2E = 0x3fb8aa3b
SCALE = 0x3db504f3
EPS = 0x3727c5ac

class G:
    def __init__(s, diag=False, nt=True, cfg=None):
        s.L = []; s.diag = diag; s.nt = " nt" if nt else ""; s.nlab = 0; s.cfg = cfg or {}
    def e(s, t):
        for x in t.strip("\n").split("\n"): s.L.append("  " + x.strip())
    def lab(s, n): s.L.append(n + ":")
    def new(s, p="L"):
        s.nlab += 1; return f"{p}_{s.nlab}"
    def stamp(s, i):
        if s.diag: s.e(f"s_memrealtime s[{64+2*i}:{65+2*i}]")
    def dump(s, n):
        if not s.diag: return
        s.e("s_mov_b64 exec, -1\ns_waitcnt lgkmcnt(0)\nv_mov_b32 v100, 0")
        for i in range(n): s.e(f"v_writelane_b32 v100, s{64+2*i}, {i}")
        s.e(f"""s_lshl_b32 s60, s2, 3
        s_add_u32 s60, s60, s28
        s_lshl_b32 s60, s60, 6
        s_add_u32 s60, s60, {DG}
        v_lshl_add_u32 v101, v1, 2, s60
        s_mov_b64 exec, 0xffff
        global_store_dword v101, v100, s[26:27]""")
    def lpoll(s, flag, expect, extra="", sleep=False, cmp="ne", vt="v2", second=None):
        L = s.new("LP"); D = s.new("LD")
        s.lab(L)
        if sleep: s.e("s_sleep 1")
        if second is None:
            s.e(f"ds_read_b32 {vt}, v127 offset:{flag*4}")
        else:
            s.e(f"ds_read_b64 v[124:125], v127 offset:{flag*4}")
        if extra: s.e(extra)
        s.e(f"s_sub_u32 s59, s59, 1\ns_cmp_lt_i32 s59, 0\ns_cbranch_scc1 {D}\ns_waitcnt lgkmcnt(0)")
        if second is None:
            s.e(f"v_cmp_{cmp}_u32 vcc, {expect}, {vt}")
        else:
            s.e(f"v_xor_b32 v124, {expect}, v124\nv_xor_b32 v125, {second}, v125\nv_or_b32 v124, v124, v125\nv_cmp_ne_u32 vcc, 0, v124")
        s.e(f"s_cbranch_vccnz {L}")
        s.lab(D)
        s.e("s_waitcnt lgkmcnt(0)")
    def setflag(s, flag, vaddr="v127", val="v126"):
        s.e(f"ds_write_b8 {vaddr}, {val} offset:{flag*4}")
    def gpoll(s, loads, execmask=None):
        L = s.new("GP"); D = s.new("GD")
        if execmask: s.e(f"s_mov_b32 exec_hi, {execmask}")
        s.lab(L)
        for (r, a, o) in loads:
            s.e(f"global_load_dwordx4 v[{r}:{r+3}], {a}, s[26:27] offset:{o} sc1")
        s.e(f"s_sub_u32 s59, s59, 16\ns_cmp_lt_i32 s59, 0\ns_cbranch_scc1 {D}\ns_waitcnt vmcnt(0)")
        for k, (r, a, o) in enumerate(loads):
            s.e(f"v_bitop3_b32 v116, v{r}, v{r+1}, v122 bitop3:0x7e\nv_bitop3_b32 v117, v{r+2}, v{r+3}, v122 bitop3:0x7e")
            if k == 0:
                if len(loads) == 1: s.e("v_bitop3_b32 v118, v116, v117, s44 bitop3:0xa8")
                else: s.e("v_or_b32 v118, v116, v117")
            else:
                s.e("v_or3_b32 v118, v116, v117, v118")
        if len(loads) > 1: s.e("v_and_b32 v118, s44, v118")
        s.e(f"v_cmp_ne_u32 vcc, 0, v118\ns_mov_b64 exec, vcc\ns_cbranch_execnz {L}")
        s.lab(D)
        s.e("s_mov_b64 exec, -1\ns_waitcnt vmcnt(0)")
    def tag(s, r, n=4):
        for i in range(n): s.e(f"v_bfi_b32 v{r+i}, s44, v122, v{r+i}")
    def untag(s, regs):
        for r in regs: s.e(f"v_and_b32 v{r}, s45, v{r}")
    def dpp(s, op, v, ctl, mask="0xf"):
        s.e(f"{op}_dpp v{v}, v{v}, v{v} {ctl} row_mask:{mask} bank_mask:0xf")
    def reduce64(s, op, v, sdst, rors=(8, 4, 2, 1)):
        for r in rors:
            s.e("s_nop 1"); s.dpp(op, v, f"row_ror:{r}")
        s.e("s_nop 1"); s.dpp(op, v, "row_bcast:15", "0xa")
        s.e("s_nop 1"); s.dpp(op, v, "row_bcast:31", "0xc")
        s.e(f"s_nop 0\nv_readlane_b32 s{sdst}, v{v}, 63\ns_nop 1")
    def treduce(s, r, rors):
        s.e(f"""s_nop 1
        v_permlane32_swap_b32 v{r}, v{r+1}
        v_permlane32_swap_b32 v{r+2}, v{r+3}
        v_add_f32 v{r}, v{r}, v{r+1}
        v_add_f32 v{r+2}, v{r+2}, v{r+3}
        s_nop 1
        v_permlane16_swap_b32 v{r}, v{r+2}
        v_add_f32 v{r}, v{r}, v{r+2}""")
        for q in rors:
            s.e("s_nop 1"); s.dpp("v_add_f32", r, f"row_ror:{q}")
    def silu_bf(s, x, t):
        s.e(f"""v_mul_f32 v{t}, 0xbfb8aa3b, v{x}
        v_exp_f32 v{t}, v{t}
        s_nop 0
        v_add_f32 v{t}, 1.0, v{t}
        v_rcp_f32 v{t}, v{t}
        s_nop 0
        v_mul_f32 v{x}, v{x}, v{t}
        v_cvt_pk_bf16_f32 v{x}, v{x}, v{x}
        v_and_b32 v{x}, s40, v{x}""")
    def rbf(s, x):
        s.e(f"v_cvt_pk_bf16_f32 v{x}, v{x}, v{x}\nv_and_b32 v{x}, s40, v{x}")

def gen(diag=False, nt=True, cfg=None):
    g = G(diag, nt, cfg); e = g.e; NT = g.nt
    g.L.append(HDR.rstrip())
    g.L.append(f"; @launch grid=(256,1,1) block=(512,1,1) lds={LDS_BYTES}")
    g.L.append('.amdgcn_target "amdgcn-amd-amdhsa--gfx950"\n.text')
    g.L.append(f".globl {NAME}_kernel\n.p2align 8\n.type {NAME}_kernel,@function\n{NAME}_kernel:")
    g.stamp(0)
    e(f"""s_cmp_ge_u32 s2, 256
    s_cbranch_scc1 L_end
    s_getpc_b64 s[36:37]
    s_load_dwordx16 s[4:19], s[0:1], 0
    s_load_dwordx8 s[20:27], s[0:1], 64
    v_lshlrev_b32 v2, 4, v0
    s_and_b32 s36, s36, 0xffffff00
    v_min_u32 v2, L_codeend-{NAME}_kernel-4, v2
    global_load_dword v112, v2, s[36:37]
    v_lshrrev_b32 v2, 6, v0
    v_and_b32 v1, 63, v0
    s_and_b32 s29, s2, 7
    v_readfirstlane_b32 s28, v2
    s_lshr_b32 s30, s2, 3
    v_lshlrev_b32 v3, 4, v1
    v_lshrrev_b32 v5, 4, v1
    v_and_b32 v6, 15, v1
    v_mov_b32 v127, {FL}
    v_mov_b32 v126, 1
    s_mov_b32 s59, 0x200000
    s_cmp_ge_u32 s28, 6
    s_cbranch_scc1 L_loader
    v_lshrrev_b32 v4, 3, v1
    v_and_b32 v7, 7, v1
    v_lshlrev_b32 v12, 1, v5
    v_xor_b32 v7, v7, v12
    v_lshlrev_b32 v7, 4, v7
    v_mov_b32 v13, 0
    s_cmp_ge_u32 s28, 4
    s_cbranch_scc1 L_fstart""")
    e(f"""s_setprio 3
    v_lshl_add_u32 v4, v4, 13, v7
    s_lshr_b32 s31, s30, 3
    s_lshl_b32 s31, s31, 20
    s_lshl_b32 s34, s29, 10
    s_or_b32 s31, s31, s34
    s_and_b32 s34, s30, 7
    s_lshl_b32 s34, s34, 7
    s_or_b32 s31, s31, s34
    s_lshl_b32 s34, s28, 18
    s_add_u32 s31, s31, s34
    s_lshl_b32 s34, s28, 12
    s_add_u32 m0, s34, {WQ}
    s_waitcnt lgkmcnt(0)
    global_load_dwordx4 v[8:11], v3, s[4:5]
    global_load_dword v122, v13, s[26:27] sc1
    s_add_u32 s32, s10, s31
    s_addc_u32 s33, s11, 0""")
    for q in range(4):
        e(f"global_load_lds_dwordx4 v4, s[32:33] offset:{q*1024}{NT}")
        if q < 3: e(f"v_add_u32 v4, {65536-1024}, v4")
    e("s_barrier\ns_waitcnt vmcnt(5)")
    g.lab("L_ln")
    g.stamp(1)
    e("s_mov_b32 s40, 0xffff0000\ns_movk_i32 s44, 0xff\ns_mov_b32 s45, 0xffffff00\nv_mov_b32 v30, 0x3b000000\ns_mov_b32 s54, 0x00010001\ns_mov_b32 s55, s54\ns_mov_b32 s56, 0x000f000f\ns_mov_b32 s57, s56")
    for i in range(4):
        e(f"v_lshlrev_b32 v{16+2*i}, 16, v{8+i}\nv_and_b32 v{17+2*i}, s40, v{8+i}")
    e("""v_add_f32 v24, v16, v17
    v_add_f32 v25, v18, v19
    v_add_f32 v26, v20, v21
    v_add_f32 v27, v22, v23
    v_add_f32 v24, v24, v25
    v_add_f32 v26, v26, v27
    v_add_f32 v24, v24, v26""")
    g.reduce64("v_add_f32", 24, 41)
    e("v_mul_f32 v25, s41, v30")
    for i in range(8): e(f"v_sub_f32 v{32+i}, v{16+i}, v25")
    e("v_mul_f32 v26, v32, v32\nv_mul_f32 v27, v33, v33")
    for i in range(2, 8): e(f"v_fmac_f32 v{26+(i&1)}, v{32+i}, v{32+i}")
    e("v_add_f32 v26, v26, v27")
    g.reduce64("v_add_f32", 26, 42)
    e(f"""v_mul_f32 v26, s42, v30
    v_cvt_pk_bf16_f32 v27, v26, v25
    v_lshlrev_b32 v26, 16, v27
    v_and_b32 v25, s40, v27
    v_add_f32 v26, {EPS:#x}, v26
    v_cvt_pk_bf16_f32 v26, v26, v26
    v_and_b32 v26, s40, v26
    v_sqrt_f32 v26, v26""")
    for i in range(8): e(f"v_sub_f32 v{32+i}, v{16+i}, v25")
    e("v_cvt_pk_bf16_f32 v26, v26, v26\nv_and_b32 v26, s40, v26\nv_rcp_f32 v26, v26")
    for i in range(4): e(f"v_cvt_pk_bf16_f32 v{40+i}, v{32+2*i}, v{33+2*i}")
    for i in range(4): e(f"v_lshlrev_b32 v{32+2*i}, 16, v{40+i}\nv_and_b32 v{33+2*i}, s40, v{40+i}")
    for i in range(8): e(f"v_mul_f32 v{32+i}, v{32+i}, v26")
    for i in range(4): e(f"v_cvt_pk_bf16_f32 v{40+i}, v{32+2*i}, v{33+2*i}")
    e(f"v_add_u32 v12, {XN}, v3\nds_write_b128 v12, v[40:43]")
    e(f"""v_lshrrev_b32 v14, 2, v6
    v_and_b32 v15, 3, v6
    v_lshl_add_u32 v14, v5, 2, v14
    v_add_u32 v123, s28, v127
    s_cmp_ge_u32 s28, 4
    s_cbranch_scc1 L_fmain""")
    e(f"""s_lshr_b32 s31, s30, 3
    s_lshl_b32 s31, s31, 8
    s_add_u32 s31, s31, {XN}
    v_lshl_add_u32 v12, v5, 3, s31""")
    for s_ in range(4): e(f"ds_read2_b64 v[{32+4*s_}:{35+4*s_}], v12 offset0:{8*s_} offset1:{8*s_+4}")
    e(f"""v_lshrrev_b32 v16, 1, v14
    v_and_b32 v16, 3, v16
    v_xor_b32 v16, s28, v16
    v_lshlrev_b32 v16, 5, v16
    v_lshl_add_u32 v16, v14, 7, v16
    v_lshl_add_u32 v16, v15, 3, v16""")
    if WQ: e(f"v_add_u32 v16, {WQ}, v16")
    e(f"""v_and_b32 v17, 1, v5
    v_lshlrev_b32 v17, 1, v17
    v_lshrrev_b32 v18, 1, v5
    v_or_b32 v17, v17, v18
    s_and_b32 s31, s2, 127
    s_lshl_b32 s31, s31, 2
    v_add_lshl_u32 v115, v17, s31, 1
    v_mov_b32 v114, v17""")
    e(f"""s_lshl_b32 s31, s29, 13
    s_add_u32 s46, s31, {QP}
    s_lshr_b32 s31, s30, 3
    s_lshl_b32 s31, s31, 11
    s_add_u32 s31, s31, s46
    s_and_b32 s34, s30, 7
    s_lshl_b32 s34, s34, 8
    s_add_u32 s31, s31, s34
    s_lshl_b32 s34, s28, 6
    s_add_u32 s31, s31, s34
    v_lshl_add_u32 v18, v5, 4, s31
    s_waitcnt vmcnt(0)""")
    g.setflag(F_WQ, "v123")
    e("global_load_ushort v113, v115, s[4:5]\nv_add_u32 v122, 1, v122")
    g.lpoll(F_WQ, "0x01010101", "\n".join(f"ds_read_b64_tr_b16 v[{48+2*k}:{49+2*k}], v16 offset:{k*2048}" for k in range(8)))
    g.stamp(2)
    for s_ in range(4):
        c = "0" if s_ == 0 else "v[20:23]"
        e(f"v_mfma_f32_16x16x32_bf16 v[20:23], v[{48+4*s_}:{51+4*s_}], v[{32+4*s_}:{35+4*s_}], {c}")
    e(f"""s_lshl_b32 s31, s28, 13
    s_add_u32 s31, s31, {KL}
    v_xor_b32 v24, v5, v6
    v_lshlrev_b32 v24, 4, v24
    v_lshl_add_u32 v24, v6, 8, v24
    v_add_u32 v24, s31, v24
    v_xor_b32 v25, 64, v24
    v_xor_b32 v26, 0x80, v24
    v_xor_b32 v27, 0xc0, v24""")
    g.tag(20)
    e(f"s_mov_b64 exec, s[54:55]\nglobal_store_dwordx4 v18, v[20:23], s[26:27] sc1\ns_mov_b64 exec, -1")
    g.stamp(3)
    e(f"""v_lshrrev_b32 v19, 5, v1
    v_and_b32 v29, 31, v1
    v_lshlrev_b32 v28, 11, v19
    v_lshl_add_u32 v28, v29, 4, v28
    s_lshl_b32 s31, s28, 9
    s_add_u32 s31, s31, s46
    s_add_u32 s31, s31, 2048
    v_add_u32 v28, s31, v28
    v_lshl_add_u32 v29, v29, 2, v19
    s_mul_i32 s31, s28, 272
    s_add_u32 s31, s31, {QL}
    v_lshl_add_u32 v29, v29, 1, s31
    v_and_b32 v31, 3, v6
    v_mul_u32_u24 v31, 272, v31
    v_lshl_add_u32 v31, v5, 4, v31
    v_add_u32 v31, {QL}, v31""")
    g.lpoll(F_K, "1")
    for kt in range(2):
        for s_ in range(4):
            r = 64 + 16*kt + 4*s_
            e(f"ds_read_b128 v[{r}:{r+3}], v{24+s_} offset:{kt*4096}")
    g.stamp(4)
    g.gpoll([(32, "v28", -2048), (36, "v28", 2048)])
    g.stamp(5)
    g.untag(range(32, 40))
    for i in range(4): e(f"v_add_f32 v{32+i}, v{32+i}, v{36+i}")
    e(f"""s_nop 1
    v_permlane32_swap_b32 v32, v33
    v_permlane32_swap_b32 v34, v35
    v_add_f32 v32, v32, v33
    v_add_f32 v34, v34, v35
    v_cvt_pk_bf16_f32 v32, v32, v34
    ds_write_b16 v29, v32
    ds_write_b16_d16_hi v29, v32 offset:4""")
    g.setflag(F_Q, "v123")
    g.lpoll(F_Q, "0x01010101", "\n".join(f"ds_read_b128 v[{40+4*k}:{43+4*k}], v31 offset:{64*k}" for k in range(4)))
    for s_ in range(4):
        for kt in range(2):
            d = 32 + 4*kt; a = 64 + 16*kt + 4*s_
            c = "0" if s_ == 0 else f"v[{d}:{d+3}]"
            e(f"v_mfma_f32_16x16x32_bf16 v[{d}:{d+3}], v[{a}:{a+3}], v[{40+4*s_}:{43+4*s_}], {c}")
    e(f"""v_lshlrev_b32 v16, 4, v6
    v_add_u32 v16, {MX}, v16
    s_lshl_b32 s31, s28, 2
    v_add_u32 v17, s31, v16
    v_add_u32 v18, {PX}, v3
    s_lshl_b32 s31, s28, 10
    v_add_u32 v19, s31, v18
    s_mov_b32 s47, {SCALE:#x}
    s_mov_b32 s48, {LOG2E:#x}""")
    for i in range(4): e(f"v_cvt_pk_bf16_f32 v{40+i}, v{32+2*i}, v{33+2*i}")
    for i in range(4): e(f"v_lshlrev_b32 v{32+2*i}, 16, v{40+i}\nv_and_b32 v{33+2*i}, s40, v{40+i}")
    for i in range(8): e(f"v_mul_f32 v{32+i}, s47, v{32+i}")
    for i in range(4): e(f"v_cvt_pk_bf16_f32 v{40+i}, v{32+2*i}, v{33+2*i}")
    for i in range(4): e(f"v_lshlrev_b32 v{32+2*i}, 16, v{40+i}\nv_and_b32 v{33+2*i}, s40, v{40+i}")
    e(f"""v_max3_f32 v44, v32, v33, v34
    v_max3_f32 v45, v35, v36, v37
    v_max3_f32 v44, v44, v38, v39
    v_max_f32 v44, v44, v45
    v_mov_b32 v45, v44
    s_nop 1
    v_permlane16_swap_b32 v44, v45
    v_max_f32 v44, v44, v45
    v_mov_b32 v45, v44
    s_nop 1
    v_permlane32_swap_b32 v44, v45
    v_max_f32 v44, v44, v45
    ds_write_b32 v17, v44""")
    g.setflag(F_M, "v123")
    e(f"""s_lshl_b32 s31, s28, 1
    v_and_b32 v20, 7, v14
    v_xor_b32 v20, s31, v20
    v_lshlrev_b32 v20, 5, v20
    v_lshl_add_u32 v20, v14, 8, v20
    v_lshl_add_u32 v20, v15, 3, v20
    v_add_u32 v22, {WO}, v20
    v_add_u32 v20, {VL}, v20
    v_xor_b32 v21, 32, v20
    v_xor_b32 v23, 32, v22""")
    g.lpoll(F_M, "0x01010101", "ds_read_b128 v[44:47], v16")
    e(f"""v_max3_f32 v44, v44, v45, v46
    v_max_f32 v48, v44, v47
    v_mul_f32 v45, s48, v48""")
    for i in range(8): e(f"v_fma_f32 v{32+i}, v{32+i}, s48, -v45")
    for i in range(8): e(f"v_exp_f32 v{32+i}, v{32+i}")
    e("s_nop 0")
    for i in range(4): e(f"v_cvt_pk_bf16_f32 v{40+i}, v{32+2*i}, v{33+2*i}")
    e("ds_write_b128 v19, v[40:43]")
    e(f"""v_add_f32 v32, v32, v33
    v_add_f32 v34, v34, v35
    v_add_f32 v36, v36, v37
    v_add_f32 v38, v38, v39
    v_add_f32 v32, v32, v34
    v_add_f32 v36, v36, v38
    v_add_f32 v32, v32, v36
    v_mov_b32 v33, v32
    s_nop 1
    v_permlane16_swap_b32 v32, v33
    v_add_f32 v32, v32, v33
    v_mov_b32 v33, v32
    s_nop 1
    v_permlane32_swap_b32 v32, v33
    v_add_f32 v32, v32, v33
    ds_write_b32 v17, v32 offset:{LX-MX}""")
    g.setflag(F_P, "v123")
    g.stamp(6)
    e(f"""s_lshl_b32 s31, s29, 5
    s_add_u32 s31, s31, s30
    s_lshl_b32 s31, s31, 11
    s_lshl_b32 s34, s28, 7
    s_add_u32 s31, s31, s34
    s_add_u32 s31, s31, {OP}
    v_and_b32 v24, 3, v6
    v_lshlrev_b32 v24, 9, v24
    v_lshl_add_u32 v24, v5, 4, v24
    v_add_u32 v24, s31, v24
    s_lshl_b32 s31, s29, 2
    s_add_u32 s31, s31, s28
    s_lshl_b32 s31, s31, 5
    s_add_u32 s31, s31, s30
    s_lshl_b32 s31, s31, 4
    s_add_u32 s31, s31, {ML}
    v_mov_b32 v25, s31
    s_lshl_b64 s[50:51], 1, s28""")
    g.lpoll(F_P, "0x01010101", "\n".join([f"ds_read_b128 v[{64+4*k}:{67+4*k}], v18 offset:{1024*k}" for k in range(4)] + [f"ds_read_b128 v[44:47], v16 offset:{LX-MX}"]))
    e(f"""v_add_f32 v44, v44, v45
    v_add_f32 v46, v46, v47
    v_add_f32 v49, v44, v46
    v_mov_b32 v50, 0
    v_mov_b32 v51, 0""")
    g.tag(48)
    e(f"s_mov_b64 exec, s[50:51]\nglobal_store_dwordx4 v25, v[48:51], s[26:27] sc1\ns_mov_b64 exec, -1")
    for ks in range(4):
        rd = []
        for t in range(2):
            for hf in range(2):
                r = 80 + 4*t + 2*hf
                rd.append(f"ds_read_b64_tr_b16 v[{r}:{r+1}], v{20+t} offset:{(2*ks+hf)*4096}")
        g.lpoll(F_V, str(ks+1), "\n".join(rd), cmp="gt")
        for t in range(2):
            d = 32 + 4*t; c = "0" if ks == 0 else f"v[{d}:{d+3}]"
            e(f"v_mfma_f32_16x16x32_bf16 v[{d}:{d+3}], v[{80+4*t}:{83+4*t}], v[{64+4*ks}:{67+4*ks}], {c}")
    e(f"""s_lshr_b32 s34, s30, 3
    s_lshl_b32 s31, s29, 16
    s_lshl_b32 s35, s34, 9
    s_add_u32 s31, s31, s35
    s_bfe_u32 s35, s30, 0x10002
    s_lshl_b32 s35, s35, 8
    s_add_u32 s31, s31, s35
    s_lshl_b32 s35, s28, 6
    s_add_u32 s31, s31, s35
    s_add_u32 s31, s31, {OP}""")
    g.tag(32)
    e(f"s_mov_b64 exec, s[56:57]\nglobal_store_dwordx4 v24, v[32:35], s[26:27] sc1")
    g.tag(36)
    e(f"global_store_dwordx4 v24, v[36:39], s[26:27] offset:64 sc1\ns_mov_b64 exec, -1")
    g.stamp(7)
    e(f"""v_lshrrev_b32 v29, 2, v1
    v_and_b32 v30, 3, v1
    v_lshlrev_b32 v26, 11, v29
    v_lshl_add_u32 v26, v30, 4, v26
    v_add_u32 v26, s31, v26
    v_add_u32 v27, 0x8000, v26
    s_lshl_b32 s31, s29, 2
    s_add_u32 s31, s31, s34
    s_lshl_b32 s31, s31, 9
    s_add_u32 s31, s31, {ML}
    v_lshl_add_u32 v28, v29, 4, s31
    s_lshl_b32 s31, s28, 4
    v_lshl_add_u32 v30, v30, 2, v114
    v_add_u32 v30, s31, v30
    v_lshlrev_b32 v30, 1, v30
    v_add_u32 v30, {OB}, v30
    v_lshlrev_b32 v31, 3, v5
    v_add_u32 v31, {OB}, v31""")
    e(f"""s_and_b32 s31, s30, 3
    s_lshl_b32 s31, s31, 15
    s_lshl_b32 s34, s28, 13
    s_add_u32 s31, s31, s34
    s_lshl_b32 s34, s29, 3
    s_lshr_b32 s35, s30, 2
    s_add_u32 s34, s34, s35
    s_lshl_b32 s34, s34, 4
    s_add_u32 s31, s31, s34
    s_add_u32 s31, s31, {SP + 2048}
    v_lshl_add_u32 v16, v5, 10, s31""")
    g.gpoll([(32, "v26", 0), (36, "v27", 0), (40, "v28", 0), (44, "v28", 256)])
    g.stamp(8)
    g.untag([40, 44])
    e("v_max_f32 v48, v40, v44")
    g.untag([41, 45])
    g.dpp("v_max_f32", 48, "row_ror:4")
    g.untag([32, 33])
    g.dpp("v_max_f32", 48, "row_ror:8")
    g.untag([34, 35])
    g.dpp("v_max_f32", 48, "row_bcast:15", "0xa")
    g.untag([36, 37])
    g.dpp("v_max_f32", 48, "row_bcast:31", "0xc")
    g.untag([38])
    e("v_readlane_b32 s41, v48, 63")
    g.untag([39])
    e(f"""s_nop 0
    v_subrev_f32 v40, s41, v40
    v_subrev_f32 v44, s41, v44
    v_mul_f32 v40, s48, v40
    v_mul_f32 v44, s48, v44
    v_exp_f32 v40, v40
    v_exp_f32 v44, v44
    s_nop 0
    v_mul_f32 v41, v41, v40
    v_fmac_f32 v41, v45, v44""")
    for i in range(4): e(f"v_mul_f32 v{32+i}, v{32+i}, v40")
    g.dpp("v_add_f32", 41, "row_ror:4")
    for i in range(2): e(f"v_fmac_f32 v{32+i}, v{36+i}, v44")
    g.dpp("v_add_f32", 41, "row_ror:8")
    for i in range(2, 4): e(f"v_fmac_f32 v{32+i}, v{36+i}, v44")
    g.dpp("v_add_f32", 41, "row_bcast:15", "0xa")
    e("""s_nop 0
    v_permlane32_swap_b32 v32, v33""")
    g.dpp("v_add_f32", 41, "row_bcast:31", "0xc")
    e("""v_permlane32_swap_b32 v34, v35
    v_add_f32 v32, v32, v33
    v_readlane_b32 s42, v41, 63
    v_add_f32 v34, v34, v35
    s_nop 1
    v_permlane16_swap_b32 v32, v34
    v_rcp_f32 v41, s42
    v_add_f32 v32, v32, v34
    s_nop 1""")
    g.dpp("v_add_f32", 32, "row_ror:4")
    e("s_nop 1")
    g.dpp("v_add_f32", 32, "row_ror:8")
    e("""v_mul_f32 v32, v32, v41
    v_cvt_pk_bf16_f32 v32, v32, v32
    ds_write_b16 v30, v32""")
    g.setflag(F_O, "v123")
    rd = [f"ds_read2_b64 v[{40+4*s_}:{43+4*s_}], v31 offset0:{8*s_} offset1:{8*s_+4}" for s_ in range(2)]
    for t in range(2):
        for k in range(4):
            r = 64 + 8*t + 2*k
            rd.append(f"ds_read_b64_tr_b16 v[{r}:{r+1}], v{22+t} offset:{k*4096}")
    g.lpoll(F_O, "0x01010101", "\n".join(rd), second="1")
    for s_ in range(2):
        for t in range(2):
            d = 32 + 4*t; c = "0" if s_ == 0 else f"v[{d}:{d+3}]"
            e(f"v_mfma_f32_16x16x32_bf16 v[{d}:{d+3}], v[{64+8*t+4*s_}:{67+8*t+4*s_}], v[{40+4*s_}:{43+4*s_}], {c}")
    e(f"""s_lshl_b32 s31, s2, 10
    s_add_u32 s31, s31, {SP}
    v_add_u32 v17, s31, v3
    v_lshlrev_b32 v18, 2, v5
    v_add_u32 v18, {GB}, v18
    v_lshlrev_b32 v113, 16, v113
    s_nop 1""")
    g.tag(32)
    e(f"s_mov_b64 exec, s[54:55]\nglobal_store_dwordx4 v16, v[32:35], s[26:27] offset:-2048 sc1")
    g.tag(36)
    e(f"global_store_dwordx4 v16, v[36:39], s[26:27] offset:2048 sc1\ns_mov_b64 exec, -1")
    g.stamp(9)
    e(f"""s_cmp_lg_u32 s28, 0
    s_cbranch_scc1 L_wend
    s_cmp_ge_u32 s2, 128
    s_cbranch_scc1 L_wend""")
    g.lpoll(F_G, "1", "ds_read_b32 v40, v18")
    g.gpoll([(32, "v17", 0)])
    g.stamp(10)
    g.untag(range(32, 36))
    g.treduce(32, (8, 4, 2, 1))
    g.rbf(32)
    e("v_mul_f32 v32, v32, v40")
    g.rbf(32)
    e(f"""v_add_f32 v32, v32, v113
    v_cvt_pk_bf16_f32 v32, v32, v32
    s_mov_b64 exec, s[54:55]
    global_store_short v115, v32, s[22:23]
    s_cmp_lg_u32 s2, 0
    s_cbranch_scc1 L_wend
    s_mov_b64 exec, 1
    global_store_dword v13, v122, s[26:27]""")
    g.lab("L_wend")
    g.stamp(11)
    g.dump(12)
    e("s_endpgm")

    g.lab("L_fstart")
    e(f"""v_add_u32 v16, {FL}, v3
    v_mov_b32 v8, 0
    v_mov_b32 v9, 0
    v_mov_b32 v10, 0
    v_mov_b32 v11, 0
    s_mov_b64 exec, 15
    ds_write_b128 v16, v[8:11]
    s_mov_b64 exec, -1
    v_mul_u32_u24 v4, 3584, v4
    v_add_u32 v4, v4, v7
    s_waitcnt lgkmcnt(0)
    global_load_dwordx4 v[8:11], v3, s[4:5]
    global_load_dword v122, v13, s[26:27] sc1
    s_barrier
    s_waitcnt vmcnt(0)
    s_branch L_ln""")
    g.lab("L_fmain")
    e(f"""s_sub_u32 s52, s28, 4
    v_add_u32 v123, s52, v127
    v_add_u32 v122, 1, v122
    s_cmp_ge_u32 s30, 28
    s_cbranch_scc1 L_fskip
    s_and_b32 s31, s29, 3
    s_lshl_b32 s31, s31, 8
    s_add_u32 s31, s31, {XN}
    v_lshl_add_u32 v12, v5, 3, s31""")
    for s_ in range(4): e(f"ds_read2_b64 v[{32+4*s_}:{35+4*s_}], v12 offset0:{8*s_} offset1:{8*s_+4}")
    e(f"""s_cmp_ge_u32 s29, 4
    s_cselect_b32 s32, s18, s16
    s_cselect_b32 s33, s19, s17
    s_and_b32 s31, s29, 3
    s_mul_i32 s31, s31, {128*3584}
    s_lshl_b32 s34, s30, 7
    s_add_u32 s31, s31, s34
    s_mul_i32 s34, s52, {8*28672}
    s_add_u32 s31, s31, s34
    s_add_u32 s32, s32, s31
    s_addc_u32 s33, s33, 0""")
    e(f"""s_mul_i32 s53, s29, 7
    s_lshr_b32 s34, s30, 2
    s_add_u32 s53, s53, s34
    s_lshl_b32 s31, s53, 15
    s_and_b32 s34, s30, 3
    s_lshl_b32 s34, s34, 8
    s_add_u32 s31, s31, s34
    s_lshl_b32 s34, s52, 14
    s_add_u32 s31, s31, s34
    s_add_u32 s36, s20, s31
    s_addc_u32 s37, s21, 0""")
    e(f"""v_lshlrev_b32 v24, 1, v5
    v_xor_b32 v24, v24, v6
    v_lshlrev_b32 v24, 4, v24
    v_lshl_add_u32 v24, v5, 10, v24
    v_xor_b32 v25, 0x80, v24
    v_add_u32 v25, 3072, v25
    v_add_u32 v26, 6144, v24
    v_add_u32 v27, 6144, v25""")
    e(f"""s_lshl_b32 s31, s52, 1
    v_lshrrev_b32 v16, 1, v14
    v_and_b32 v16, 3, v16
    v_xor_b32 v16, s31, v16
    v_lshlrev_b32 v16, 5, v16
    v_lshl_add_u32 v16, v14, 7, v16
    v_lshl_add_u32 v16, v15, 3, v16
    v_add_u32 v16, {GU}, v16
    v_xor_b32 v17, 32, v16""")
    e(f"""s_mul_i32 s31, s29, 7168
    s_lshl_b32 s34, s30, 8
    s_add_u32 s31, s31, s34
    s_lshl_b32 s34, s52, 7
    s_add_u32 s31, s31, s34
    s_add_u32 s31, s31, {GP}
    v_lshl_add_u32 v18, v5, 4, s31
    s_lshl_b32 s34, s52, 13
    s_add_u32 m0, s34, {GU}""")
    g.lpoll(F_VI, "1", sleep=True)
    g.stamp(2)
    for p in range(8):
        e(f"global_load_lds_dwordx4 v4, s[32:33] offset:{(p&3)*1024}{NT}")
        if p == 3: e(f"s_add_u32 m0, m0, 4096\nv_add_u32 v4, {28672+3072}, v4")
        elif p < 7: e(f"v_add_u32 v4, {28672-1024}, v4")
    e(f"s_lshl_b32 s34, s52, 12\ns_add_u32 m0, s34, {DN}\ns_nop 0")
    for q in range(4): e(f"global_load_lds_dwordx4 v{24+q}, s[36:37] offset:{q*1024}{NT}")
    g.setflag(F_GI, "v123")
    g.stamp(3)
    e("s_waitcnt vmcnt(4)")
    g.setflag(F_GU, "v123")
    rd = []
    for t in range(2):
        for k in range(8):
            r = 48 + 16*t + 2*k
            rd.append(f"ds_read_b64_tr_b16 v[{r}:{r+1}], v{16+t} offset:{k*2048}")
    g.lpoll(F_GU, "0x0101", "\n".join(rd))
    g.stamp(4)
    for s_ in range(4):
        for t in range(2):
            d = 20 + 4*t; c = "0" if s_ == 0 else f"v[{d}:{d+3}]"
            e(f"v_mfma_f32_16x16x32_bf16 v[{d}:{d+3}], v[{48+16*t+4*s_}:{51+16*t+4*s_}], v[{32+4*s_}:{35+4*s_}], {c}")
    e(f"""v_lshrrev_b32 v28, 3, v1
    v_mul_u32_u24 v28, 7168, v28
    v_and_b32 v29, 7, v1
    v_lshl_add_u32 v28, v29, 4, v28
    s_lshl_b32 s31, s53, 7
    s_add_u32 s31, s31, {GP}
    v_add_u32 v28, s31, v28
    s_nop 1""")
    g.tag(20)
    e(f"s_mov_b64 exec, s[54:55]\nglobal_store_dwordx4 v18, v[20:23], s[26:27] sc1")
    g.tag(24)
    e(f"global_store_dwordx4 v18, v[24:27], s[26:27] offset:64 sc1\ns_mov_b64 exec, -1")
    g.stamp(5)
    e("s_waitcnt vmcnt(2)")
    g.setflag(F_DN, "v123")
    e(f"""v_lshl_add_u32 v29, v29, 2, v5
    v_lshlrev_b32 v29, 1, v29
    v_add_u32 v29, {HB}, v29
    s_lshl_b32 s31, s52, 2
    v_and_b32 v16, 7, v14
    v_xor_b32 v16, s31, v16
    v_lshlrev_b32 v16, 5, v16
    v_lshl_add_u32 v16, v14, 8, v16
    v_lshl_add_u32 v16, v15, 3, v16
    v_add_u32 v16, {DN}, v16
    v_xor_b32 v17, 32, v16
    v_xor_b32 v18, 64, v16
    v_xor_b32 v19, 0x60, v16
    v_lshlrev_b32 v31, 3, v5
    v_add_u32 v31, {HB}, v31""")
    e(f"""s_and_b32 s31, s30, 3
    s_lshl_b32 s31, s31, 15
    s_lshl_b32 s34, s52, 14
    s_add_u32 s31, s31, s34
    s_lshl_b32 s34, s53, 4
    s_add_u32 s31, s31, s34
    s_add_u32 s31, s31, {BP + 2048}
    v_lshl_add_u32 v30, v5, 10, s31
    v_add_u32 v12, 8192, v30
    s_cmp_lg_u32 s52, 0
    s_cbranch_scc1 L_fdown""")
    g.gpoll([(32, "v28", 0)])
    g.stamp(6)
    g.untag(range(32, 36))
    e(f"""s_nop 0
    v_permlane16_swap_b32 v32, v33
    v_permlane16_swap_b32 v34, v35
    v_add_f32 v32, v32, v33
    v_add_f32 v34, v34, v35
    s_nop 0""")
    g.dpp("v_add_f32", 32, "row_ror:8")
    g.dpp("v_add_f32", 34, "row_ror:8")
    e("s_nop 1\nv_permlane32_swap_b32 v32, v34")
    g.rbf(32); g.rbf(34)
    g.silu_bf(32, 33)
    e("v_mul_f32 v32, v32, v34\nv_cvt_pk_bf16_f32 v32, v32, v32\nds_write_b16 v29, v32")
    g.setflag(F_H)
    g.lab("L_fdown")
    rd = ["ds_read2_b64 v[40:43], v31 offset0:0 offset1:4"]
    for t in range(4):
        for k in range(2):
            r = 48 + 4*t + 2*k
            rd.append(f"ds_read_b64_tr_b16 v[{r}:{r+1}], v{16+t} offset:{k*4096}")
    g.lpoll(F_H, "1", "\n".join(rd), second="0x0101")
    for t in range(4):
        e(f"v_mfma_f32_16x16x32_bf16 v[{64+4*t}:{67+4*t}], v[{48+4*t}:{51+4*t}], v[40:43], 0")
    e("s_nop 4")
    e("s_mov_b64 exec, s[54:55]")
    for t in range(4):
        g.tag(64 + 4*t)
        e(f"global_store_dwordx4 v{30 if t < 2 else 12}, v[{64+4*t}:{67+4*t}], s[26:27] offset:{-2048 if t % 2 == 0 else 2048} sc1")
    e("s_mov_b64 exec, -1")
    g.stamp(7)
    e("s_branch L_fgather")
    g.lab("L_fskip")
    g.lpoll(F_VI, "1", sleep=True)
    g.setflag(F_GI, "v123")
    g.lab("L_fgather")
    e(f"""s_cmp_lg_u32 s52, 0
    s_cbranch_scc1 L_fend
    s_cmp_ge_u32 s2, 128
    s_cbranch_scc1 L_fend
    s_lshl_b32 s31, s2, 10
    s_add_u32 s31, s31, {BP}
    v_add_u32 v17, s31, v3
    v_lshlrev_b32 v18, 2, v5
    v_add_u32 v18, {GB}, v18
    v_mov_b32 v32, 0
    v_mov_b32 v33, 0
    v_mov_b32 v34, 0
    v_mov_b32 v35, 0""")
    g.gpoll([(32, "v17", 0)], execmask="0x00ffffff")
    g.stamp(8)
    g.untag(range(32, 36))
    g.treduce(32, (8, 4, 2, 1))
    g.rbf(32)
    g.silu_bf(32, 33)
    e("ds_write_b32 v18, v32")
    g.setflag(F_G)
    g.lab("L_fend")
    g.stamp(9)
    g.dump(10)
    e("s_endpgm")

    g.lab("L_loader")
    e(f"""s_lshl_b32 s31, s29, 22
    s_lshl_b32 s34, s30, 15
    s_add_u32 s31, s31, s34
    s_add_u32 s31, s31, 0x300000
    s_cmp_eq_u32 s28, 7
    s_cbranch_scc1 L_lv""")
    e(f"""v_xor_b32 v8, v5, v6
    v_lshlrev_b32 v8, 4, v8
    v_lshl_add_u32 v8, v5, 8, v8
    v_xor_b32 v9, 64, v8
    v_xor_b32 v10, 0x80, v8
    v_xor_b32 v11, 0xc0, v8
    s_mov_b32 m0, {KL}
    s_mov_b32 s35, 8
    s_waitcnt lgkmcnt(0)
    s_add_u32 s32, s6, s31
    s_addc_u32 s33, s7, 0
    s_barrier""")
    g.stamp(1)
    g.lab("L_kloop")
    for q in range(4): e(f"global_load_lds_dwordx4 v{8+q}, s[32:33] offset:{q*1024}{NT}")
    e(f"""s_add_u32 m0, m0, 4096
    s_add_u32 s32, s32, 4096
    s_addc_u32 s33, s33, 0
    s_sub_u32 s35, s35, 1
    s_cmp_lg_u32 s35, 0
    s_cbranch_scc1 L_kloop""")
    g.setflag(F_KI)
    g.stamp(2)
    e(f"""v_lshlrev_b32 v8, 1, v5
    v_xor_b32 v8, v8, v6
    v_lshlrev_b32 v8, 4, v8
    v_lshl_add_u32 v8, v5, 10, v8
    v_xor_b32 v9, 0x80, v8
    v_add_u32 v9, 3072, v9
    v_add_u32 v10, 6144, v8
    v_add_u32 v11, 6144, v9
    s_lshl_b32 s31, s29, 19
    s_lshr_b32 s34, s30, 2
    s_lshl_b32 s34, s34, 16
    s_add_u32 s31, s31, s34
    s_and_b32 s34, s30, 3
    s_lshl_b32 s34, s34, 8
    s_add_u32 s31, s31, s34
    s_add_u32 s32, s12, s31
    s_addc_u32 s33, s13, 0
    s_mov_b32 m0, {WO}
    s_mov_b32 s35, 4
    s_waitcnt vmcnt(0)""")
    g.setflag(F_K)
    g.stamp(3)
    g.lpoll(F_GI, "0x0101", sleep=True)
    g.stamp(4)
    g.lab("L_oloop")
    for q in range(4): e(f"global_load_lds_dwordx4 v{8+q}, s[32:33] offset:{q*1024}{NT}")
    e(f"""s_add_u32 m0, m0, 4096
    s_add_u32 s32, s32, 16384
    s_addc_u32 s33, s33, 0
    s_sub_u32 s35, s35, 1
    s_cmp_lg_u32 s35, 0
    s_cbranch_scc1 L_oloop""")
    g.stamp(5)
    e("s_waitcnt vmcnt(0)")
    g.setflag(F_WO)
    g.stamp(6)
    g.dump(7)
    e("s_endpgm")
    g.lab("L_lv")
    e(f"""v_lshlrev_b32 v8, 1, v5
    v_xor_b32 v8, v8, v6
    v_lshlrev_b32 v8, 4, v8
    v_lshl_add_u32 v8, v5, 8, v8
    v_xor_b32 v9, 0x80, v8
    s_mov_b32 m0, {VL}
    s_mov_b32 s35, 8
    s_waitcnt lgkmcnt(0)
    s_add_u32 s32, s8, s31
    s_addc_u32 s33, s9, 0
    s_barrier""")
    g.lpoll(F_KI, "1", sleep=True)
    g.stamp(1)
    g.lab("L_vloop")
    for q in range(4): e(f"global_load_lds_dwordx4 v{8+(q&1)}, s[32:33] offset:{q*1024}{NT}")
    e(f"""s_add_u32 m0, m0, 4096
    s_add_u32 s32, s32, 4096
    s_addc_u32 s33, s33, 0
    s_sub_u32 s35, s35, 1
    s_cmp_lg_u32 s35, 0
    s_cbranch_scc1 L_vloop""")
    g.setflag(F_VI)
    g.stamp(2)
    for ks in range(4):
        e(f"v_mov_b32 v126, {ks+1}\ns_waitcnt vmcnt({24-8*ks})")
        g.setflag(F_V)
        g.stamp(3+ks)
    g.dump(7)
    g.lab("L_end")
    e("s_endpgm")
    g.lab("L_codeend")
    g.L.append(f""".section .rodata,"a"
.p2align 6
.amdhsa_kernel {NAME}_kernel
  .amdhsa_next_free_vgpr 128
  .amdhsa_next_free_sgpr 102
  .amdhsa_accum_offset 128
  .amdhsa_group_segment_fixed_size 0
  .amdhsa_kernarg_size 96
  .amdhsa_user_sgpr_count 2
  .amdhsa_user_sgpr_kernarg_segment_ptr 1
  .amdhsa_system_sgpr_workgroup_id_x 1
  .amdhsa_float_denorm_mode_32 3
.end_amdhsa_kernel""")
    return "\n".join(g.L) + "\n"

if __name__ == "__main__":
    open("k_diag.s", "w").write(gen(diag=True))
    open("k_nt.s", "w").write(gen(diag=False, nt=True))
    open("k_def.s", "w").write(gen(diag=False, nt=False))
```
